```python
import torch

def _softmax(x, axis=-1):
    return torch.softmax(x, dim=axis)
def _gelu(x):
    return torch.nn.functional.gelu(x, approximate="tanh")
def _silu(x):
    return torch.nn.functional.silu(x)
def _sigmoid(x):
    return torch.sigmoid(x)
def _layernorm(x, axis=-1, eps=1e-5):
    m = x.mean(dim=axis, keepdim=True)
    v = x.var(dim=axis, keepdim=True, unbiased=False)
    return (x - m) / torch.sqrt(v + eps)
def _scatter_add(tgt, idx, src, axis=0):
    return tgt.clone().index_add_(axis, idx, src)
def _segment_sum(src, seg, n):
    out = torch.zeros((n,) + src.shape[1:], dtype=src.dtype)
    return out.index_add_(0, seg, src)
def _pad(x, pw):
    flat = tuple(v for pair in reversed(pw) for v in pair)
    return torch.nn.functional.pad(x, flat)

kernel_name = 'standalone__low_rank_proj_linformer__prompt'

def setup_inputs():

    _w = (lambda a: (lambda t: t.to(torch.bfloat16) if t.is_floating_point() else t)(torch.as_tensor(a)))
    B, H, Sq, Skv, Dh, R = 1, 32, 2048, 2048, 128, 8
    return {
        "q": _w((lambda *s: torch.randn(*s, dtype=torch.bfloat16) * 0.8)(B, H, Sq, Dh)),
        "k": _w((lambda *s: torch.randn(*s, dtype=torch.bfloat16) * 0.8)(B, H, Skv, Dh)),
        "v": _w((lambda *s: torch.randn(*s, dtype=torch.bfloat16) * 0.05)(B, H, Skv, Dh)),
        "e_proj": _w((lambda *s: torch.randn(*s, dtype=torch.bfloat16) * 0.8)(R, Skv) * (Skv ** -0.5)),
        "f_proj": _w((lambda *s: torch.randn(*s, dtype=torch.bfloat16) * 0.05)(R, Skv) * (Skv ** -0.5)),
    }

def reference(q, k, v, e_proj, f_proj):
    B, H, Sq, Dh = q.shape
    kp = torch.einsum("rn,bhnd->bhrd", e_proj, k)
    vp = torch.einsum("rn,bhnd->bhrd", f_proj, v)
    scores = torch.einsum("bhqd,bhrd->bhqr", q, kp) * (Dh ** -0.5)
    p = _softmax(scores, axis=-1)
    o = torch.einsum("bhqr,bhrd->bhqd", p, vp)
    return o
```

```python
import sys
HDR = open('standalone__low_rank_proj_linformer__prompt.s.ref').read().split('\n')
hdr_lines = [l for l in HDR if l.startswith(';') and '@launch' not in l and 'Override launch' not in l and 'grid=ceil' not in l]

out = []
def E(s=''):
    out.append(s)

for l in hdr_lines: E(l)
E('; @launch kernel=proj_kernel grid=(256,1,1) block=(512,1,1) lds=131072')
E('; @launch kernel=attn_kernel grid=(256,1,1) block=(512,1,1) lds=4096')
E('.amdgcn_target "amdgcn-amd-amdhsa--gfx950"')
E('.text')

E('.globl proj_kernel')
E('.p2align 8')
E('.type proj_kernel,@function')
E('proj_kernel:')
E('    s_cmp_ge_u32 s2, 256')
E('    s_cbranch_scc1 L_end1')
E('    s_load_dwordx4 s[4:7], s[0:1], 8')
E('    s_load_dwordx4 s[8:11], s[0:1], 24')
E('    s_load_dwordx2 s[12:13], s[0:1], 56')
E('    s_lshr_b32 s14, s2, 3            ; h')
E('    s_lshr_b32 s15, s2, 2')
E('    s_and_b32 s15, s15, 1            ; sel (0: K/e, 1: V/f)')
E('    s_and_b32 s16, s2, 3             ; chunk c')
E('    v_and_b32 v1, 63, v0             ; lane')
E('    v_lshrrev_b32 v2, 6, v0          ; wave')
E('    v_and_b32 v3, 15, v0             ; ii')
E('    v_readfirstlane_b32 s17, v2      ; w')
E('    v_lshrrev_b32 v2, 4, v1          ; g')
E('    s_lshl_b32 s18, s17, 14          ; wbase = w*16384')
E('    v_lshlrev_b32 v5, 1, v2')
E('    v_xor_b32 v5, v5, v3')
E('    v_lshlrev_b32 v5, 4, v5')
E('    v_lshl_add_u32 v4, v2, 8, v5     ; vA')
E('    v_xor_b32 v5, 128, v4            ; vB')
E('    s_lshl_b32 s19, s16, 10')
E('    s_lshl_b32 s20, s17, 7')
E('    s_add_u32 s19, s19, s20          ; c*1024 + w*128')
E('    v_lshlrev_b32 v6, 12, v3')
E('    v_lshl_add_u32 v6, v2, 4, v6')
E('    v_add_u32 v6, s19, v6')
E('    v_lshrrev_b32 v7, 2, v3          ; r4')
E('    v_and_b32 v16, 1, v2')
E('    v_lshl_or_b32 v16, v16, 2, v7    ; hh')
E('    v_lshl_add_u32 v17, v2, 3, v7    ; g*8+r4')
E('    v_lshlrev_b32 v17, 8, v17')
E('    v_and_b32 v18, 3, v3             ; c4')
E('    v_lshl_add_u32 v17, v18, 3, v17')
E('    v_add_u32 v17, s18, v17          ; base')
for b in range(8):
    E(f'    v_xor_b32 v18, {b}, v16')
    E(f'    v_lshl_add_u32 v{8+b}, v18, 5, v17')
E('    s_waitcnt lgkmcnt(0)')
E('    s_cmp_eq_u32 s15, 0')
E('    s_cselect_b64 s[20:21], s[4:5], s[6:7]')
E('    s_cselect_b64 s[22:23], s[8:9], s[10:11]')
E('    s_lshl_b32 s24, s14, 19')
E('    s_lshl_b32 s25, s16, 17')
E('    s_add_u32 s25, s24, s25')
E('    s_add_u32 s24, s20, s25')
E('    s_addc_u32 s25, s21, 0')
E('    s_mov_b32 s26, 131072')
E('    s_mov_b32 s27, 0x20000')
E('    s_mov_b32 s28, s22')
E('    s_mov_b32 s29, s23')
E('    s_mov_b32 s30, 32768')
E('    s_mov_b32 s31, 0x20000')
E('    s_mov_b32 s32, s12')
E('    s_mov_b32 s33, s13')
E('    s_mov_b32 s34, 1048576')
E('    s_mov_b32 s35, 0x20000')
E('    buffer_load_dwordx4 v[20:23], v6, s[28:31], 0 offen')
E('    buffer_load_dwordx4 v[24:27], v6, s[28:31], 0 offen offset:64')
for j in range(4):
    E(f'    s_add_u32 s36, s18, {j*4096}')
    E('    s_mov_b32 m0, s36')
    E('    s_nop 0')
    for i in range(4):
        va = 'v4' if i < 2 else 'v5'
        off = f' offset:{i*1024}' if i else ''
        E(f'    buffer_load_dwordx4 {va}, s[24:27], s36 offen{off} lds')
B0 = 28
ACC = 92
for t in range(2):
    E(f'    s_waitcnt vmcnt({8 if t == 0 else 0})')
    bb = B0 + 32*t
    for b in range(8):
        E(f'    ds_read_b64_tr_b16 v[{bb+4*b}:{bb+4*b+1}], v{8+b} offset:{t*8192}')
        E(f'    ds_read_b64_tr_b16 v[{bb+4*b+2}:{bb+4*b+3}], v{8+b} offset:{t*8192+1024}')
    for b in range(8):
        E(f'    s_waitcnt lgkmcnt({14-2*b})')
        a = 20 + 4*t
        c = '0' if t == 0 else f'v[{ACC+4*b}:{ACC+4*b+3}]'
        E(f'    v_mfma_f32_16x16x32_bf16 v[{ACC+4*b}:{ACC+4*b+3}], v[{a}:{a+3}], v[{bb+4*b}:{bb+4*b+3}], {c}')
E('    v_lshlrev_b32 v16, 11, v2        ; g*4*512')
E('    v_lshl_add_u32 v16, v3, 2, v16')
E('    v_add_u32 v16, s18, v16')
E('    s_nop 7')
for b in range(8):
    for i in range(4):
        E(f'    ds_write_b32 v16, v{ACC+4*b+i} offset:{i*512+b*64}')
E('    v_lshrrev_b32 v17, 6, v0')
E('    v_lshlrev_b32 v17, 9, v17')
E('    v_lshl_add_u32 v17, v1, 3, v17   ; (t>>6)*512 + (t&63)*8')
E('    v_add_u32 v18, 0x10000, v17')
E('    s_waitcnt lgkmcnt(0)')
E('    s_barrier')
for w in range(8):
    base = 'v17' if w < 4 else 'v18'
    E(f'    ds_read_b64 v[{28+2*w}:{29+2*w}], {base} offset:{(w&3)*16384}')
E('    s_lshl_b32 s36, s2, 12')
E('    v_lshlrev_b32 v19, 3, v0')
for w in range(1, 8):
    E(f'    s_waitcnt lgkmcnt({7-w})')
    E(f'    v_add_f32 v28, v28, v{28+2*w}')
    E(f'    v_add_f32 v29, v29, v{29+2*w}')
E('    buffer_store_dwordx2 v[28:29], v19, s[32:35], s36 offen')
E('L_end1:')
E('    s_endpgm')

E('.globl attn_kernel')
E('.p2align 8')
E('.type attn_kernel,@function')
E('attn_kernel:')
E('    s_cmp_ge_u32 s2, 256')
E('    s_cbranch_scc1 L_end2')
E('    s_load_dwordx2 s[4:5], s[0:1], 0')
E('    s_load_dwordx2 s[6:7], s[0:1], 40')
E('    s_load_dwordx2 s[8:9], s[0:1], 56')
E('    s_lshl_b32 s10, s2, 16')
E('    s_lshr_b32 s11, s2, 3')
E('    s_lshl_b32 s11, s11, 15          ; h*32768')
E('    v_and_b32 v1, 63, v0             ; lane')
E('    v_and_b32 v3, 15, v0             ; ii')
E('    v_lshrrev_b32 v2, 4, v1          ; g')
E('    v_lshrrev_b32 v7, 6, v0          ; w')
E('    v_lshl_add_u32 v4, v7, 5, v3     ; w*32+ii')
E('    v_lshlrev_b32 v4, 8, v4')
E('    v_lshl_add_u32 v4, v2, 4, v4')
E('    v_add_u32 v5, 4096, v4           ; tile1')
E('    v_lshlrev_b32 v6, 3, v0          ; tid*8')
for c in range(8):
    E(f'    s_mov_b32 s{40+c}, {c*4096}')
E('    s_waitcnt lgkmcnt(0)')
E('    s_add_u32 s12, s4, s10')
E('    s_addc_u32 s13, s5, 0')
E('    s_mov_b32 s14, 65536')
E('    s_mov_b32 s15, 0x20000')
E('    s_add_u32 s16, s6, s10')
E('    s_addc_u32 s17, s7, 0')
E('    s_mov_b32 s18, 65536')
E('    s_mov_b32 s19, 0x20000')
E('    s_add_u32 s20, s8, s11')
E('    s_addc_u32 s21, s9, 0')
E('    s_mov_b32 s22, 32768')
E('    s_mov_b32 s23, 0x20000')
PR = 48
for c in range(8):
    E(f'    buffer_load_dwordx2 v[{PR+2*c}:{PR+2*c+1}], v6, s[20:23], s{40+c} offen')
QR = 16
for t in range(2):
    for s in range(4):
        va = 'v4' if t == 0 else 'v5'
        off = f' offset:{s*64}' if s else ''
        E(f'    buffer_load_dwordx4 v[{QR+16*t+4*s}:{QR+16*t+4*s+3}], {va}, s[12:15], 0 offen{off}')
VP = 80
for i in range(16):
    E(f'    v_mov_b32 v{VP+i}, 0')
E('    v_lshlrev_b32 v8, 2, v0')
E('    v_and_b32 v9, 63, v0')
E('    v_lshlrev_b32 v9, 5, v9          ; 2*dpair*16')
E('    v_lshl_add_u32 v9, v7, 1, v9     ; + r*2')
E('    s_waitcnt vmcnt(8)')
for k in range(2):
    p = PR + 8*k
    for c in range(1, 4):
        E(f'    v_add_f32 v{p}, v{p}, v{p+2*c}')
        E(f'    v_add_f32 v{p+1}, v{p+1}, v{p+2*c+1}')
E(f'    v_cvt_pk_bf16_f32 v10, v{PR}, v{PR+1}')
E(f'    v_cvt_pk_bf16_f32 v11, v{PR+8}, v{PR+9}')
E('    ds_write_b32 v8, v10')
E('    ds_write_b16 v9, v11 offset:2048')
E('    ds_write_b16_d16_hi v9, v11 offset:2064')
E('    v_and_b32 v10, 7, v3')
E('    v_lshlrev_b32 v10, 8, v10')
E('    v_lshl_add_u32 v10, v2, 4, v10')
E('    v_lshrrev_b32 v11, 2, v3')
E('    v_lshlrev_b32 v11, 3, v11')
E('    v_and_b32 v12, 3, v3')
E('    v_add_u32 v11, v11, v12')
E('    v_lshlrev_b32 v11, 4, v11')
E('    v_and_b32 v12, 1, v2')
E('    v_lshl_add_u32 v11, v12, 3, v11  ; vpT: d*16 + (g&1)*8')
E('    s_waitcnt lgkmcnt(0)')
E('    s_barrier')
KP = 64
for s in range(4):
    E(f'    ds_read_b128 v[{KP+4*s}:{KP+4*s+3}], v10 offset:{s*64}')
E('    s_mov_b32 exec_hi, 0')
for b in range(8):
    E(f'    ds_read_b64 v[{VP+2*b}:{VP+2*b+1}], v11 offset:{2048+(b>>1)*512+(b&1)*64}')
E('    s_mov_b32 exec_hi, -1')
E('    s_mov_b32 s24, 0x3db504f3        ; 128^-0.5')
E('    s_mov_b32 s25, 0x3fb8aa3b        ; log2(e)')
E('    s_mov_b32 s26, 0xffff0000')
E('    s_waitcnt lgkmcnt(0)')
S = 96
O = 100
for t in range(2):
    E(f'    s_waitcnt vmcnt({4 if t == 0 else 4})')
    q = QR + 16*t
    for s in range(4):
        c = '0' if s == 0 else f'v[{S}:{S+3}]'
        E(f'    v_mfma_f32_16x16x32_bf16 v[{S}:{S+3}], v[{KP+4*s}:{KP+4*s+3}], v[{q+4*s}:{q+4*s+3}], {c}')
    E('    s_nop 7')
    E(f'    v_cvt_pk_bf16_f32 v12, v{S}, v{S+1}')
    E(f'    v_cvt_pk_bf16_f32 v13, v{S+2}, v{S+3}')
    E(f'    v_lshlrev_b32 v{S}, 16, v12')
    E(f'    v_and_b32 v{S+1}, s26, v12')
    E(f'    v_lshlrev_b32 v{S+2}, 16, v13')
    E(f'    v_and_b32 v{S+3}, s26, v13')
    for i in range(4):
        E(f'    v_mul_f32 v{S+i}, s24, v{S+i}')
    E(f'    v_cvt_pk_bf16_f32 v12, v{S}, v{S+1}')
    E(f'    v_cvt_pk_bf16_f32 v13, v{S+2}, v{S+3}')
    E(f'    v_lshlrev_b32 v{S}, 16, v12')
    E(f'    v_and_b32 v{S+1}, s26, v12')
    E(f'    v_lshlrev_b32 v{S+2}, 16, v13')
    E(f'    v_and_b32 v{S+3}, s26, v13')
    E(f'    v_max_f32 v12, v{S}, v{S+1}')
    E(f'    v_max3_f32 v12, v12, v{S+2}, v{S+3}')
    E('    ds_swizzle_b32 v13, v12 offset:0x401F')
    E('    s_waitcnt lgkmcnt(0)')
    E('    v_max_f32 v12, v12, v13')
    for i in range(4):
        E(f'    v_sub_f32 v{S+i}, v{S+i}, v12')
    for i in range(4):
        E(f'    v_mul_f32 v{S+i}, s25, v{S+i}')
    for i in range(4):
        E(f'    v_exp_f32 v{S+i}, v{S+i}')
    E('    s_nop 0')
    E(f'    v_add_f32 v12, v{S}, v{S+1}')
    E(f'    v_add_f32 v13, v{S+2}, v{S+3}')
    E('    v_add_f32 v12, v12, v13')
    E('    ds_swizzle_b32 v13, v12 offset:0x401F')
    E('    s_waitcnt lgkmcnt(0)')
    E('    v_add_f32 v12, v12, v13')
    E('    v_rcp_f32 v12, v12')
    E('    s_nop 0')
    for i in range(4):
        E(f'    v_mul_f32 v{S+i}, v{S+i}, v12')
    E(f'    v_cvt_pk_bf16_f32 v14, v{S}, v{S+1}')
    E(f'    v_cvt_pk_bf16_f32 v15, v{S+2}, v{S+3}')
    E('    s_nop 1')
    for b in range(8):
        E(f'    v_mfma_f32_16x16x16_bf16 v[{O+4*b}:{O+4*b+3}], v[{VP+2*b}:{VP+2*b+1}], v[14:15], 0')
    E('    s_nop 7')
    va = 'v4' if t == 0 else 'v5'
    for s in range(4):
        o = O + 8*s
        for j in range(4):
            E(f'    v_cvt_pk_bf16_f32 v{o+j}, v{o+2*j}, v{o+2*j+1}')
        off = f' offset:{s*64}' if s else ''
        E(f'    buffer_store_dwordx4 v[{o}:{o+3}], {va}, s[16:19], 0 offen{off}')
E('L_end2:')
E('    s_endpgm')

E('.section .rodata,"a"')
for name, nv in (('proj_kernel', 128), ('attn_kernel', 136)):
    E('.p2align 6')
    E(f'.amdhsa_kernel {name}')
    E(f'  .amdhsa_next_free_vgpr {nv}')
    E('  .amdhsa_next_free_sgpr 64')
    E(f'  .amdhsa_accum_offset {nv}')
    E('  .amdhsa_group_segment_fixed_size 0')
    E('  .amdhsa_kernarg_size 64')
    E('  .amdhsa_user_sgpr_count 2')
    E('  .amdhsa_user_sgpr_kernarg_segment_ptr 1')
    E('  .amdhsa_system_sgpr_workgroup_id_x 1')
    E('.end_amdhsa_kernel')
open(sys.argv[1] if len(sys.argv) > 1 else 'standalone__low_rank_proj_linformer__prompt.s', 'w').write('\n'.join(out) + '\n')
```

```python
import sys, os
HDR = open('standalone__low_rank_proj_linformer__prompt.s.ref').read().split('\n')
hdr_lines = [l for l in HDR if l.startswith(';') and '@launch' not in l and 'Override launch' not in l and 'grid=ceil' not in l]
NT = ' nt'
out = []
def E(s=''):
    out.append(s)
K = 'standalone__low_rank_proj_linformer__prompt_kernel'
LDS_OPS = 0
for l in hdr_lines: E(l)
E(f'; @launch grid=(256,1,1) block=(512,1,1) lds={65536}')
E('.amdgcn_target "amdgcn-amd-amdhsa--gfx950"')
E('.text')
E(f'.globl {K}')
E('.p2align 8')
E(f'.type {K},@function')
E(f'{K}:')
E('    s_cmp_ge_u32 s2, 256')
E('    s_cbranch_scc1 L_end')
E('    s_load_dwordx2 s[36:37], s[0:1], 0     ; q')
E('    s_load_dwordx4 s[4:7], s[0:1], 8       ; k, v')
E('    s_load_dwordx4 s[8:11], s[0:1], 24     ; e, f')
E('    s_load_dwordx4 s[40:43], s[0:1], 40')
E('    s_load_dwordx2 s[12:13], s[0:1], 56    ; ws')
E('    s_lshr_b32 s14, s2, 3            ; h')
E('    s_lshr_b32 s15, s2, 2')
E('    s_and_b32 s15, s15, 1            ; sel (0: K/e, 1: V/f)')
E('    s_and_b32 s16, s2, 3             ; chunk c')
E('    v_and_b32 v1, 63, v0             ; lane')
E('    v_lshrrev_b32 v2, 6, v0          ; wave')
E('    v_and_b32 v3, 15, v0             ; ii')
E('    v_readfirstlane_b32 s17, v2      ; w')
E('    v_lshrrev_b32 v2, 4, v1          ; g')
E('    s_lshl_b32 s18, s17, 13')
E('    s_lshl_b32 s19, s17, 14')
E('    v_lshlrev_b32 v5, 1, v2')
E('    v_xor_b32 v5, v5, v3')
E('    v_lshlrev_b32 v5, 4, v5')
E('    v_lshl_add_u32 v4, v2, 8, v5     ; vA')
E('    v_xor_b32 v5, 128, v4            ; vB')
E('    s_lshl_b32 s20, s16, 10')
E('    s_lshl_b32 s21, s17, 7')
E('    s_add_u32 s20, s20, s21          ; c*1024 + w*128')
E('    v_lshlrev_b32 v6, 12, v3')
E('    v_lshl_add_u32 v6, v2, 4, v6')
E('    v_add_u32 v6, s20, v6')
E('    v_lshrrev_b32 v7, 2, v3          ; r4')
E('    v_and_b32 v16, 1, v2')
E('    v_lshl_or_b32 v16, v16, 2, v7    ; hh')
E('    v_lshl_add_u32 v17, v2, 3, v7    ; g*8+r4')
E('    v_lshlrev_b32 v17, 8, v17')
E('    v_and_b32 v18, 3, v3             ; c4')
E('    v_lshl_add_u32 v17, v18, 3, v17')
E('    v_add_u32 v17, s18, v17          ; base')
for b in range(8):
    E(f'    v_xor_b32 v18, {b}, v16')
    E(f'    v_lshl_add_u32 v{8+b}, v18, 5, v17')
E('    v_lshrrev_b32 v7, 6, v0          ; w')
E('    v_lshl_add_u32 v16, v7, 5, v3    ; w*32+ii')
E('    v_lshlrev_b32 v16, 8, v16')
E('    v_lshl_add_u32 v16, v2, 4, v16')
E('    v_add_u32 v17, 4096, v16         ; tile1')
E('    s_waitcnt lgkmcnt(0)')
E('    s_cmp_eq_u32 s15, 0')
E('    s_cselect_b64 s[20:21], s[4:5], s[6:7]')
E('    s_cselect_b64 s[22:23], s[8:9], s[10:11]')
E('    s_lshl_b32 s24, s14, 19')
E('    s_lshl_b32 s25, s16, 17')
E('    s_add_u32 s25, s24, s25')
E('    s_add_u32 s24, s20, s25')
E('    s_addc_u32 s25, s21, 0')
E('    s_mov_b32 s26, 131072')
E('    s_mov_b32 s27, 0x20000')
E('    s_mov_b32 s28, s22')
E('    s_mov_b32 s29, s23')
E('    s_mov_b32 s30, 32768')
E('    s_mov_b32 s31, 0x20000')
E('    s_lshl_b32 s3, s14, 15')
E('    s_add_u32 s32, s12, s3')
E('    s_addc_u32 s33, s13, 0')
E('    s_mov_b32 s34, 32768')
E('    s_mov_b32 s35, 0x20000')
E('    s_lshl_b32 s3, s2, 16')
E('    s_add_u32 s44, s36, s3')
E('    s_addc_u32 s45, s37, 0')
E('    s_mov_b32 s46, 65536')
E('    s_mov_b32 s47, 0x20000')
E('    s_add_u32 s48, s40, s3')
E('    s_addc_u32 s49, s41, 0')
E('    s_mov_b32 s50, 65536')
E('    s_mov_b32 s51, 0x20000')
AR = 20; B0 = 28; ACC = 60; QR = 92
E(f'    buffer_load_dwordx4 v[{AR}:{AR+3}], v6, s[28:31], 0 offen')
E(f'    buffer_load_dwordx4 v[{AR+4}:{AR+7}], v6, s[28:31], 0 offen offset:64')
def dma(t):
    for j in range(2):
        E(f'    s_add_u32 s38, s18, {j*4096}')
        E(f'    s_add_u32 s39, s19, {t*8192+j*4096}')
        E('    s_mov_b32 m0, s38')
        E('    s_nop 0')
        for i in range(4):
            va = 'v4' if i < 2 else 'v5'
            off = f' offset:{i*1024}' if i else ''
            E(f'    buffer_load_dwordx4 {va}, s[24:27], s39 offen{off}{NT} lds')
dma(0)
for t in range(2):
    for s in range(4):
        va = 'v16' if t == 0 else 'v17'
        off = f' offset:{s*64}' if s else ''
        E(f'    buffer_load_dwordx4 v[{QR+16*t+4*s}:{QR+16*t+4*s+3}], {va}, s[44:47], 0 offen{off}{NT}')
for t in range(2):
    E(f'    s_waitcnt vmcnt({8 if t == 0 else 0})')
    for b in range(8):
        E(f'    ds_read_b64_tr_b16 v[{B0+4*b}:{B0+4*b+1}], v{8+b}')
        E(f'    ds_read_b64_tr_b16 v[{B0+4*b+2}:{B0+4*b+3}], v{8+b} offset:1024')
    for b in range(8):
        E(f'    s_waitcnt lgkmcnt({14-2*b})')
        if b == 7 and t == 0:
            dma(1)
        a = AR + 4*t
        c = '0' if t == 0 else f'v[{ACC+4*b}:{ACC+4*b+3}]'
        E(f'    v_mfma_f32_16x16x32_bf16 v[{ACC+4*b}:{ACC+4*b+3}], v[{a}:{a+3}], v[{B0+4*b}:{B0+4*b+3}], {c}')
E('    v_lshlrev_b32 v18, 11, v2        ; g*4*512')
E('    v_lshl_add_u32 v18, v3, 2, v18')
E('    v_add_u32 v18, s18, v18')
E('    s_nop 7')
for b in range(8):
    for i in range(4):
        E(f'    ds_write_b32 v18, v{ACC+4*b+i} offset:{i*512+b*64}')
E('    v_lshlrev_b32 v18, 9, v7')
E('    v_lshl_add_u32 v18, v1, 3, v18   ; (t>>6)*512 + (t&63)*8')
E('    s_waitcnt lgkmcnt(0)')
E('    s_barrier')
for w in range(8):
    E(f'    ds_read_b64 v[{B0+2*w}:{B0+2*w+1}], v18 offset:{w*8192}')
E('    s_and_b32 s3, s2, 7')
E('    s_lshl_b32 s3, s3, 12')
E('    v_lshlrev_b32 v19, 3, v0')
for w in range(1, 8):
    E(f'    s_waitcnt lgkmcnt({7-w})')
    E(f'    v_add_f32 v{B0}, v{B0}, v{B0+2*w}')
    E(f'    v_add_f32 v{B0+1}, v{B0+1}, v{B0+2*w+1}')
E(f'    buffer_store_dwordx2 v[{B0}:{B0+1}], v19, s[32:35], s3 offen sc1')
E('    s_waitcnt vmcnt(0)')
E('    s_barrier')
E('    s_cmp_lg_u32 s17, 0')
E('    s_cbranch_scc1 L_wait_done')
E('    s_lshl_b32 s3, s14, 2')
E('    v_mov_b32 v18, s3')
E('    v_mov_b32 v20, 1')
E('    s_mov_b64 s[52:53], exec')
E('    s_mov_b64 exec, 1')
E('    global_atomic_add v18, v20, s[42:43]')
E('    s_mov_b32 s54, 0')
E('L_poll:')
E('    global_load_dword v20, v18, s[42:43] sc1')
E('    s_add_u32 s54, s54, 1')
E('    s_waitcnt vmcnt(0)')
E('    v_readfirstlane_b32 s55, v20')
E('    s_cmp_ge_u32 s55, 8')
E('    s_cbranch_scc1 L_poll_done')
E('    s_sleep 1')
E('    s_cmp_lt_u32 s54, 0x100000')
E('    s_cbranch_scc1 L_poll')
E('L_poll_done:')
E('    s_mov_b64 exec, s[52:53]')
E('L_wait_done:')
E('    s_barrier')
PR = 28
for c in range(8):
    E(f'    s_mov_b32 s{56+c}, {c*4096}')
for c in range(8):
    E(f'    buffer_load_dwordx2 v[{PR+2*c}:{PR+2*c+1}], v19, s[32:35], s{56+c} offen sc1')
KP = 44; VP = 60; S = 76; O = 28
O = 124 - 32
for i in range(16):
    E(f'    v_mov_b32 v{VP+i}, 0')
E(f'    v_lshlrev_b32 v8, 2, v0')
E('    v_and_b32 v9, 63, v0')
E('    v_lshlrev_b32 v9, 5, v9          ; 2*dpair*16')
E('    v_lshl_add_u32 v9, v7, 1, v9     ; + r*2')
E('    s_waitcnt vmcnt(0)')
for k in range(2):
    p = PR + 8*k
    for c in range(1, 4):
        E(f'    v_add_f32 v{p}, v{p}, v{p+2*c}')
        E(f'    v_add_f32 v{p+1}, v{p+1}, v{p+2*c+1}')
E(f'    v_cvt_pk_bf16_f32 v10, v{PR}, v{PR+1}')
E(f'    v_cvt_pk_bf16_f32 v11, v{PR+8}, v{PR+9}')
E(f'    ds_write_b32 v8, v10 offset:{LDS_OPS}')
E(f'    ds_write_b16 v9, v11 offset:{LDS_OPS+2048}')
E(f'    ds_write_b16_d16_hi v9, v11 offset:{LDS_OPS+2064}')
E('    v_and_b32 v10, 7, v3')
E('    v_lshlrev_b32 v10, 8, v10')
E('    v_lshl_add_u32 v10, v2, 4, v10')
E('    v_lshrrev_b32 v11, 2, v3')
E('    v_lshlrev_b32 v11, 3, v11')
E('    v_and_b32 v12, 3, v3')
E('    v_add_u32 v11, v11, v12')
E('    v_lshlrev_b32 v11, 4, v11')
E('    v_and_b32 v12, 1, v2')
E('    v_lshl_add_u32 v11, v12, 3, v11  ; vpT: d*16 + (g&1)*8')
E('    s_waitcnt lgkmcnt(0)')
E('    s_barrier')
for s in range(4):
    E(f'    ds_read_b128 v[{KP+4*s}:{KP+4*s+3}], v10 offset:{LDS_OPS+s*64}')
E('    s_mov_b32 exec_hi, 0')
for b in range(8):
    E(f'    ds_read_b64 v[{VP+2*b}:{VP+2*b+1}], v11 offset:{LDS_OPS+2048+(b>>1)*512+(b&1)*64}')
E('    s_mov_b32 exec_hi, -1')
E('    s_mov_b32 s24, 0x3db504f3        ; 128^-0.5')
E('    s_mov_b32 s25, 0x3fb8aa3b        ; log2(e)')
E('    s_mov_b32 s26, 0xffff0000')
E('    s_waitcnt lgkmcnt(0)')
OB = [20, 24, 28, 32, 36, 40, 80, 84]
for t in range(2):
    q = QR + 16*t
    for s in range(4):
        c = '0' if s == 0 else f'v[{S}:{S+3}]'
        E(f'    v_mfma_f32_16x16x32_bf16 v[{S}:{S+3}], v[{KP+4*s}:{KP+4*s+3}], v[{q+4*s}:{q+4*s+3}], {c}')
    E('    s_nop 7')
    E(f'    v_cvt_pk_bf16_f32 v12, v{S}, v{S+1}')
    E(f'    v_cvt_pk_bf16_f32 v13, v{S+2}, v{S+3}')
    E(f'    v_lshlrev_b32 v{S}, 16, v12')
    E(f'    v_and_b32 v{S+1}, s26, v12')
    E(f'    v_lshlrev_b32 v{S+2}, 16, v13')
    E(f'    v_and_b32 v{S+3}, s26, v13')
    for i in range(4):
        E(f'    v_mul_f32 v{S+i}, s24, v{S+i}')
    E(f'    v_cvt_pk_bf16_f32 v12, v{S}, v{S+1}')
    E(f'    v_cvt_pk_bf16_f32 v13, v{S+2}, v{S+3}')
    E(f'    v_lshlrev_b32 v{S}, 16, v12')
    E(f'    v_and_b32 v{S+1}, s26, v12')
    E(f'    v_lshlrev_b32 v{S+2}, 16, v13')
    E(f'    v_and_b32 v{S+3}, s26, v13')
    E(f'    v_max_f32 v12, v{S}, v{S+1}')
    E(f'    v_max3_f32 v12, v12, v{S+2}, v{S+3}')
    E('    ds_swizzle_b32 v13, v12 offset:0x401F')
    E('    s_waitcnt lgkmcnt(0)')
    E('    v_max_f32 v12, v12, v13')
    for i in range(4):
        E(f'    v_sub_f32 v{S+i}, v{S+i}, v12')
    for i in range(4):
        E(f'    v_mul_f32 v{S+i}, s25, v{S+i}')
    for i in range(4):
        E(f'    v_exp_f32 v{S+i}, v{S+i}')
    E('    s_nop 0')
    E(f'    v_add_f32 v12, v{S}, v{S+1}')
    E(f'    v_add_f32 v13, v{S+2}, v{S+3}')
    E('    v_add_f32 v12, v12, v13')
    E('    ds_swizzle_b32 v13, v12 offset:0x401F')
    E('    s_waitcnt lgkmcnt(0)')
    E('    v_add_f32 v12, v12, v13')
    E('    v_rcp_f32 v12, v12')
    E('    s_nop 0')
    for i in range(4):
        E(f'    v_mul_f32 v{S+i}, v{S+i}, v12')
    E(f'    v_cvt_pk_bf16_f32 v14, v{S}, v{S+1}')
    E(f'    v_cvt_pk_bf16_f32 v15, v{S+2}, v{S+3}')
    E('    s_nop 1')
    for b in range(8):
        E(f'    v_mfma_f32_16x16x16_bf16 v[{OB[b]}:{OB[b]+3}], v[{VP+2*b}:{VP+2*b+1}], v[14:15], 0')
    E('    s_nop 7')
    va = 'v16' if t == 0 else 'v17'
    for s in range(4):
        o0, o1 = OB[2*s], OB[2*s+1]
        d = q + 4*s
        E(f'    v_cvt_pk_bf16_f32 v{d}, v{o0}, v{o0+1}')
        E(f'    v_cvt_pk_bf16_f32 v{d+1}, v{o0+2}, v{o0+3}')
        E(f'    v_cvt_pk_bf16_f32 v{d+2}, v{o1}, v{o1+1}')
        E(f'    v_cvt_pk_bf16_f32 v{d+3}, v{o1+2}, v{o1+3}')
        off = f' offset:{s*64}' if s else ''
        E(f'    buffer_store_dwordx4 v[{d}:{d+3}], {va}, s[48:51], 0 offen{off}')
E('L_end:')
E('    s_endpgm')
E('.section .rodata,"a"')
E('.p2align 6')
E(f'.amdhsa_kernel {K}')
E('  .amdhsa_next_free_vgpr 124')
E('  .amdhsa_next_free_sgpr 72')
E('  .amdhsa_accum_offset 124')
E('  .amdhsa_group_segment_fixed_size 0')
E('  .amdhsa_kernarg_size 64')
E('  .amdhsa_user_sgpr_count 2')
E('  .amdhsa_user_sgpr_kernarg_segment_ptr 1')
E('  .amdhsa_system_sgpr_workgroup_id_x 1')
E('.end_amdhsa_kernel')
open(sys.argv[1], 'w').write('\n'.join(out) + '\n')
```

```python
import sys, os
NT = os.environ.get('NT', '')
NTL = ' nt' if 'l' in NT else ''
NTS = ' nt' if 's' in NT else ''
HDR = open('standalone__low_rank_proj_linformer__prompt.s.ref').read().split('\n')
hdr_lines = [l for l in HDR if l.startswith(';') and '@launch' not in l and 'Override launch' not in l and 'grid=ceil' not in l]

out = []
def E(s=''):
    out.append(s)

for l in hdr_lines: E(l)
E('; @launch kernel=proj_kernel grid=(256,1,1) block=(512,1,1) lds=131072')
E('; @launch kernel=attn_kernel grid=(256,1,1) block=(512,1,1) lds=4096')
E('.amdgcn_target "amdgcn-amd-amdhsa--gfx950"')
E('.text')

E('.globl proj_kernel')
E('.p2align 8')
E('.type proj_kernel,@function')
E('proj_kernel:')
E('    s_cmp_ge_u32 s2, 256')
E('    s_cbranch_scc1 L_end1')
E('    s_load_dwordx4 s[4:7], s[0:1], 8')
E('    s_load_dwordx4 s[8:11], s[0:1], 24')
E('    s_load_dwordx2 s[12:13], s[0:1], 56')
E('    s_lshr_b32 s14, s2, 3            ; h')
E('    s_lshr_b32 s15, s2, 2')
E('    s_and_b32 s15, s15, 1            ; sel (0: K/e, 1: V/f)')
E('    s_and_b32 s16, s2, 3             ; chunk c')
E('    v_and_b32 v1, 63, v0             ; lane')
E('    v_lshrrev_b32 v2, 6, v0          ; wave')
E('    v_and_b32 v3, 15, v0             ; ii')
E('    v_readfirstlane_b32 s17, v2      ; w')
E('    v_lshrrev_b32 v2, 4, v1          ; g')
E('    s_lshl_b32 s18, s17, 14          ; wbase = w*16384')
E('    v_lshlrev_b32 v5, 1, v2')
E('    v_xor_b32 v5, v5, v3')
E('    v_lshlrev_b32 v5, 4, v5')
E('    v_lshl_add_u32 v4, v2, 8, v5     ; vA')
E('    v_xor_b32 v5, 128, v4            ; vB')
E('    s_lshl_b32 s19, s16, 10')
E('    s_lshl_b32 s20, s17, 7')
E('    s_add_u32 s19, s19, s20          ; c*1024 + w*128')
E('    v_lshlrev_b32 v6, 12, v3')
E('    v_lshl_add_u32 v6, v2, 4, v6')
E('    v_add_u32 v6, s19, v6')
E('    v_lshrrev_b32 v7, 2, v3          ; r4')
E('    v_and_b32 v16, 1, v2')
E('    v_lshl_or_b32 v16, v16, 2, v7    ; hh')
E('    v_lshl_add_u32 v17, v2, 3, v7    ; g*8+r4')
E('    v_lshlrev_b32 v17, 8, v17')
E('    v_and_b32 v18, 3, v3             ; c4')
E('    v_lshl_add_u32 v17, v18, 3, v17')
E('    v_add_u32 v17, s18, v17          ; base')
for b in range(8):
    E(f'    v_xor_b32 v18, {b}, v16')
    E(f'    v_lshl_add_u32 v{8+b}, v18, 5, v17')
E('    s_waitcnt lgkmcnt(0)')
E('    s_cmp_eq_u32 s15, 0')
E('    s_cselect_b64 s[20:21], s[4:5], s[6:7]')
E('    s_cselect_b64 s[22:23], s[8:9], s[10:11]')
E('    s_lshl_b32 s24, s14, 19')
E('    s_lshl_b32 s25, s16, 17')
E('    s_add_u32 s25, s24, s25')
E('    s_add_u32 s24, s20, s25')
E('    s_addc_u32 s25, s21, 0')
E('    s_mov_b32 s26, 131072')
E('    s_mov_b32 s27, 0x20000')
E('    s_mov_b32 s28, s22')
E('    s_mov_b32 s29, s23')
E('    s_mov_b32 s30, 32768')
E('    s_mov_b32 s31, 0x20000')
E('    s_mov_b32 s32, s12')
E('    s_mov_b32 s33, s13')
E('    s_mov_b32 s34, 1048576')
E('    s_mov_b32 s35, 0x20000')
E('    buffer_load_dwordx4 v[20:23], v6, s[28:31], 0 offen')
E('    buffer_load_dwordx4 v[24:27], v6, s[28:31], 0 offen offset:64')
for j in range(4):
    E(f'    s_add_u32 s36, s18, {j*4096}')
    E('    s_mov_b32 m0, s36')
    E('    s_nop 0')
    for i in range(4):
        va = 'v4' if i < 2 else 'v5'
        off = f' offset:{i*1024}' if i else ''
        E(f'    buffer_load_dwordx4 {va}, s[24:27], s36 offen{off}{NTL} lds')
B0 = 28
ACC = 92
for t in range(2):
    E(f'    s_waitcnt vmcnt({8 if t == 0 else 0})')
    bb = B0 + 32*t
    for b in range(8):
        E(f'    ds_read_b64_tr_b16 v[{bb+4*b}:{bb+4*b+1}], v{8+b} offset:{t*8192}')
        E(f'    ds_read_b64_tr_b16 v[{bb+4*b+2}:{bb+4*b+3}], v{8+b} offset:{t*8192+1024}')
    for b in range(8):
        E(f'    s_waitcnt lgkmcnt({14-2*b})')
        a = 20 + 4*t
        c = '0' if t == 0 else f'v[{ACC+4*b}:{ACC+4*b+3}]'
        E(f'    v_mfma_f32_16x16x32_bf16 v[{ACC+4*b}:{ACC+4*b+3}], v[{a}:{a+3}], v[{bb+4*b}:{bb+4*b+3}], {c}')
E('    v_lshlrev_b32 v16, 11, v2        ; g*4*512')
E('    v_lshl_add_u32 v16, v3, 2, v16')
E('    v_add_u32 v16, s18, v16')
E('    s_nop 7')
for b in range(8):
    for i in range(4):
        E(f'    ds_write_b32 v16, v{ACC+4*b+i} offset:{i*512+b*64}')
E('    v_lshrrev_b32 v17, 6, v0')
E('    v_lshlrev_b32 v17, 9, v17')
E('    v_lshl_add_u32 v17, v1, 3, v17   ; (t>>6)*512 + (t&63)*8')
E('    v_add_u32 v18, 0x10000, v17')
E('    s_waitcnt lgkmcnt(0)')
E('    s_barrier')
for w in range(8):
    base = 'v17' if w < 4 else 'v18'
    E(f'    ds_read_b64 v[{28+2*w}:{29+2*w}], {base} offset:{(w&3)*16384}')
E('    s_lshl_b32 s36, s2, 12')
E('    v_lshlrev_b32 v19, 3, v0')
for w in range(1, 8):
    E(f'    s_waitcnt lgkmcnt({7-w})')
    E(f'    v_add_f32 v28, v28, v{28+2*w}')
    E(f'    v_add_f32 v29, v29, v{29+2*w}')
E('    buffer_store_dwordx2 v[28:29], v19, s[32:35], s36 offen')
E('L_end1:')
E('    s_endpgm')

E('.globl attn_kernel')
E('.p2align 8')
E('.type attn_kernel,@function')
E('attn_kernel:')
E('    s_cmp_ge_u32 s2, 256')
E('    s_cbranch_scc1 L_end2')
E('    s_load_dwordx2 s[4:5], s[0:1], 0')
E('    s_load_dwordx2 s[6:7], s[0:1], 40')
E('    s_load_dwordx2 s[8:9], s[0:1], 56')
E('    s_lshl_b32 s10, s2, 16')
E('    s_lshr_b32 s11, s2, 3')
E('    s_lshl_b32 s11, s11, 15          ; h*32768')
E('    v_and_b32 v1, 63, v0             ; lane')
E('    v_and_b32 v3, 15, v0             ; ii')
E('    v_lshrrev_b32 v2, 4, v1          ; g')
E('    v_lshrrev_b32 v7, 6, v0          ; w')
E('    v_lshl_add_u32 v4, v7, 5, v3     ; w*32+ii')
E('    v_lshlrev_b32 v4, 8, v4')
E('    v_lshl_add_u32 v4, v2, 4, v4')
E('    v_add_u32 v5, 4096, v4           ; tile1')
E('    v_lshlrev_b32 v6, 3, v0          ; tid*8')
for c in range(8):
    E(f'    s_mov_b32 s{40+c}, {c*4096}')
E('    s_waitcnt lgkmcnt(0)')
E('    s_add_u32 s12, s4, s10')
E('    s_addc_u32 s13, s5, 0')
E('    s_mov_b32 s14, 65536')
E('    s_mov_b32 s15, 0x20000')
E('    s_add_u32 s16, s6, s10')
E('    s_addc_u32 s17, s7, 0')
E('    s_mov_b32 s18, 65536')
E('    s_mov_b32 s19, 0x20000')
E('    s_add_u32 s20, s8, s11')
E('    s_addc_u32 s21, s9, 0')
E('    s_mov_b32 s22, 32768')
E('    s_mov_b32 s23, 0x20000')
PR = 48
for c in range(8):
    E(f'    buffer_load_dwordx2 v[{PR+2*c}:{PR+2*c+1}], v6, s[20:23], s{40+c} offen')
QR = 16
for t in range(2):
    for s in range(4):
        va = 'v4' if t == 0 else 'v5'
        off = f' offset:{s*64}' if s else ''
        E(f'    buffer_load_dwordx4 v[{QR+16*t+4*s}:{QR+16*t+4*s+3}], {va}, s[12:15], 0 offen{off}{NTL}')
VP = 80
for i in range(16):
    E(f'    v_mov_b32 v{VP+i}, 0')
E('    v_lshlrev_b32 v8, 2, v0')
E('    v_and_b32 v9, 63, v0')
E('    v_lshlrev_b32 v9, 5, v9          ; 2*dpair*16')
E('    v_lshl_add_u32 v9, v7, 1, v9     ; + r*2')
E('    s_waitcnt vmcnt(8)')
for k in range(2):
    p = PR + 8*k
    for c in range(1, 4):
        E(f'    v_add_f32 v{p}, v{p}, v{p+2*c}')
        E(f'    v_add_f32 v{p+1}, v{p+1}, v{p+2*c+1}')
E(f'    v_cvt_pk_bf16_f32 v10, v{PR}, v{PR+1}')
E(f'    v_cvt_pk_bf16_f32 v11, v{PR+8}, v{PR+9}')
E('    ds_write_b32 v8, v10')
E('    ds_write_b16 v9, v11 offset:2048')
E('    ds_write_b16_d16_hi v9, v11 offset:2064')
E('    v_and_b32 v10, 7, v3')
E('    v_lshlrev_b32 v10, 8, v10')
E('    v_lshl_add_u32 v10, v2, 4, v10')
E('    v_lshrrev_b32 v11, 2, v3')
E('    v_lshlrev_b32 v11, 3, v11')
E('    v_and_b32 v12, 3, v3')
E('    v_add_u32 v11, v11, v12')
E('    v_lshlrev_b32 v11, 4, v11')
E('    v_and_b32 v12, 1, v2')
E('    v_lshl_add_u32 v11, v12, 3, v11  ; vpT: d*16 + (g&1)*8')
E('    s_waitcnt lgkmcnt(0)')
E('    s_barrier')
KP = 64
for s in range(4):
    E(f'    ds_read_b128 v[{KP+4*s}:{KP+4*s+3}], v10 offset:{s*64}')
E('    s_mov_b32 exec_hi, 0')
for b in range(8):
    E(f'    ds_read_b64 v[{VP+2*b}:{VP+2*b+1}], v11 offset:{2048+(b>>1)*512+(b&1)*64}')
E('    s_mov_b32 exec_hi, -1')
E('    s_mov_b32 s24, 0x3db504f3        ; 128^-0.5')
E('    s_mov_b32 s25, 0x3fb8aa3b        ; log2(e)')
E('    s_mov_b32 s26, 0xffff0000')
E('    s_waitcnt lgkmcnt(0)')
S = 96
O = 100
for t in range(2):
    E(f'    s_waitcnt vmcnt({4 if t == 0 else 4})')
    q = QR + 16*t
    for s in range(4):
        c = '0' if s == 0 else f'v[{S}:{S+3}]'
        E(f'    v_mfma_f32_16x16x32_bf16 v[{S}:{S+3}], v[{KP+4*s}:{KP+4*s+3}], v[{q+4*s}:{q+4*s+3}], {c}')
    E('    s_nop 7')
    E(f'    v_cvt_pk_bf16_f32 v12, v{S}, v{S+1}')
    E(f'    v_cvt_pk_bf16_f32 v13, v{S+2}, v{S+3}')
    E(f'    v_lshlrev_b32 v{S}, 16, v12')
    E(f'    v_and_b32 v{S+1}, s26, v12')
    E(f'    v_lshlrev_b32 v{S+2}, 16, v13')
    E(f'    v_and_b32 v{S+3}, s26, v13')
    for i in range(4):
        E(f'    v_mul_f32 v{S+i}, s24, v{S+i}')
    E(f'    v_cvt_pk_bf16_f32 v12, v{S}, v{S+1}')
    E(f'    v_cvt_pk_bf16_f32 v13, v{S+2}, v{S+3}')
    E(f'    v_lshlrev_b32 v{S}, 16, v12')
    E(f'    v_and_b32 v{S+1}, s26, v12')
    E(f'    v_lshlrev_b32 v{S+2}, 16, v13')
    E(f'    v_and_b32 v{S+3}, s26, v13')
    E(f'    v_max_f32 v12, v{S}, v{S+1}')
    E(f'    v_max3_f32 v12, v12, v{S+2}, v{S+3}')
    E('    ds_swizzle_b32 v13, v12 offset:0x401F')
    E('    s_waitcnt lgkmcnt(0)')
    E('    v_max_f32 v12, v12, v13')
    for i in range(4):
        E(f'    v_sub_f32 v{S+i}, v{S+i}, v12')
    for i in range(4):
        E(f'    v_mul_f32 v{S+i}, s25, v{S+i}')
    for i in range(4):
        E(f'    v_exp_f32 v{S+i}, v{S+i}')
    E('    s_nop 0')
    E(f'    v_add_f32 v12, v{S}, v{S+1}')
    E(f'    v_add_f32 v13, v{S+2}, v{S+3}')
    E('    v_add_f32 v12, v12, v13')
    E('    ds_swizzle_b32 v13, v12 offset:0x401F')
    E('    s_waitcnt lgkmcnt(0)')
    E('    v_add_f32 v12, v12, v13')
    E('    v_rcp_f32 v12, v12')
    E('    s_nop 0')
    for i in range(4):
        E(f'    v_mul_f32 v{S+i}, v{S+i}, v12')
    E(f'    v_cvt_pk_bf16_f32 v14, v{S}, v{S+1}')
    E(f'    v_cvt_pk_bf16_f32 v15, v{S+2}, v{S+3}')
    E('    s_nop 1')
    for b in range(8):
        E(f'    v_mfma_f32_16x16x16_bf16 v[{O+4*b}:{O+4*b+3}], v[{VP+2*b}:{VP+2*b+1}], v[14:15], 0')
    E('    s_nop 7')
    va = 'v4' if t == 0 else 'v5'
    for s in range(4):
        o = O + 8*s
        for j in range(4):
            E(f'    v_cvt_pk_bf16_f32 v{o+j}, v{o+2*j}, v{o+2*j+1}')
        off = f' offset:{s*64}' if s else ''
        E(f'    buffer_store_dwordx4 v[{o}:{o+3}], {va}, s[16:19], 0 offen{off}{NTS}')
E('L_end2:')
E('    s_endpgm')

E('.section .rodata,"a"')
for name, nv in (('proj_kernel', 128), ('attn_kernel', 136)):
    E('.p2align 6')
    E(f'.amdhsa_kernel {name}')
    E(f'  .amdhsa_next_free_vgpr {nv}')
    E('  .amdhsa_next_free_sgpr 64')
    E(f'  .amdhsa_accum_offset {nv}')
    E('  .amdhsa_group_segment_fixed_size 0')
    E('  .amdhsa_kernarg_size 64')
    E('  .amdhsa_user_sgpr_count 2')
    E('  .amdhsa_user_sgpr_kernarg_segment_ptr 1')
    E('  .amdhsa_system_sgpr_workgroup_id_x 1')
    E('.end_amdhsa_kernel')
open(sys.argv[1] if len(sys.argv) > 1 else 'standalone__low_rank_proj_linformer__prompt.s', 'w').write('\n'.join(out) + '\n')
```
